```python
import torch

def _softmax(x, axis=-1):
    return torch.softmax(x, dim=axis)

def _gelu(x):
    return torch.nn.functional.gelu(x, approximate='tanh')

def _silu(x):
    return torch.nn.functional.silu(x)

def _sigmoid(x):
    return torch.sigmoid(x)

def _layernorm(x, axis=-1, eps=1e-05):
    m = x.mean(dim=axis, keepdim=True)
    v = x.var(dim=axis, keepdim=True, unbiased=False)
    return (x - m) / torch.sqrt(v + eps)

def _scatter_add(tgt, idx, src, axis=0):
    return tgt.clone().index_add_(axis, idx, src)

def _segment_sum(src, seg, n):
    out = torch.zeros((n,) + src.shape[1:], dtype=src.dtype)
    return out.index_add_(0, seg, src)

def _pad(x, pw):
    flat = tuple((v for pair in reversed(pw) for v in pair))
    return torch.nn.functional.pad(x, flat)
kernel_name = 'parallel_sum__memory_aug_recurrent_mem_tr__dense_activation_silu__prompt'

def setup_inputs():

    _w = lambda a: (lambda t: t.to(torch.bfloat16) if t.is_floating_point() else t)(torch.as_tensor(a))

    def _A_setup():
        B, S, Dm = (1, 2048, 640)
        H, Dh = (32, 192)
        M, seg = (8, 32)
        seg = min(seg, S)
        S = S // seg * seg
        return {'x': _w((lambda *s: torch.randn(*s, dtype=torch.bfloat16) * 0.05)(B, S, Dm)), 'mem0': _w((lambda *s: torch.randn(*s, dtype=torch.bfloat16) * 0.2)(B, M, Dm)), 'Wq': _w((lambda *s: torch.randn(*s, dtype=torch.bfloat16) * 1.6)(Dm, H, Dh) * Dm ** (-0.5)), 'Wk': _w((lambda *s: torch.randn(*s, dtype=torch.bfloat16) * 1.6)(Dm, H, Dh) * Dm ** (-0.5)), 'Wv': _w((lambda *s: torch.randn(*s, dtype=torch.bfloat16) * 0.2)(Dm, H, Dh) * Dm ** (-0.5)), 'Wo': _w((lambda *s: torch.randn(*s, dtype=torch.bfloat16) * 0.2)(H, Dh, Dm) * (H * Dh) ** (-0.5)), 'seg_len': seg}
    _A_in = _A_setup()

    def _B_setup():
        B, S, D, F = (1, 2048, 640, 1536)
        return {'x': _w((lambda *s: torch.randn(*s, dtype=torch.bfloat16) * 0.05)(B, S, D)), 'w1': _w((lambda *s: torch.randn(*s, dtype=torch.bfloat16) * 0.8)(D, F) * D ** (-0.5)), 'w2': _w((lambda *s: torch.randn(*s, dtype=torch.bfloat16) * 0.1)(F, D) * F ** (-0.5))}
    _B_in = _B_setup()
    return {'A_x': _A_in['x'], 'A_mem0': _A_in['mem0'], 'A_Wq': _A_in['Wq'], 'A_Wk': _A_in['Wk'], 'A_Wv': _A_in['Wv'], 'A_Wo': _A_in['Wo'], 'A_seg_len': _A_in['seg_len'], 'B_x': _B_in['x'], 'B_w1': _B_in['w1'], 'B_w2': _B_in['w2']}

def reference(A_x, A_mem0, A_Wq, A_Wk, A_Wv, A_Wo, A_seg_len, B_x, B_w1, B_w2):

    def _A_ref(x, mem0, Wq, Wk, Wv, Wo, seg_len):
        B, S, Dm = x.shape
        H, Dh = (Wq.shape[1], Wq.shape[2])
        M = mem0.shape[1]
        scale = Dh ** (-0.5)
        n_seg = S // seg_len
        L = M + seg_len
        idx = torch.arange(L)
        mask = (idx[:, None] < M) | (idx[:, None] >= idx[None, :])
        mem = mem0
        outs = []
        for s in range(n_seg):
            xs = x[:, s * seg_len:(s + 1) * seg_len, :].clone()
            h = torch.concatenate([mem, xs], axis=1)
            q = torch.einsum('btd,dhe->bhte', h, Wq)
            k = torch.einsum('btd,dhe->bhte', h, Wk)
            v = torch.einsum('btd,dhe->bhte', h, Wv)
            scores = torch.einsum('bhqe,bhke->bhqk', q, k) * scale
            scores = torch.where(mask[None, None], scores, -1000000000.0)
            p = _softmax(scores, axis=-1)
            o = torch.einsum('bhqk,bhke->bhqe', p, v)
            o = torch.einsum('bhte,hed->btd', o, Wo)
            mem = o[:, :M, :].clone()
            outs.append(o[:, M:, :])
        return torch.concatenate(outs, axis=1)

    def _B_ref(x, w1, w2):
        h = torch.einsum('bsd,df->bsf', x, w1)
        h = _silu(h)
        out = torch.einsum('bsf,fd->bsd', h, w2)
        return out
    x = A_x
    xn = _layernorm(x, axis=-1)
    return x + _A_ref(xn, A_mem0, A_Wq, A_Wk, A_Wv, A_Wo, A_seg_len) + _B_ref(xn, B_w1, B_w2)
```

```python
import re

TRANS = ('v_exp_', 'v_log_', 'v_rcp_', 'v_rsq_', 'v_sqrt_', 'v_sin_', 'v_cos_')


def v(i, n=1):
    return f"v{i}" if n == 1 else f"v[{i}:{i+n-1}]"


def s(i, n=1):
    return f"s{i}" if n == 1 else f"s[{i}:{i+n-1}]"


_reg_re = re.compile(r'^-?(?:abs\()?\|?([vsa])(?:(\d+)|\[(\d+):(\d+)\])\|?\)?$')


def regs_of(op):
    op = op.strip()
    if op in ('vcc', 'exec', 'm0', 'scc'):
        return {(op, 0)}
    if op in ('vcc_lo', 'vcc_hi'):
        return {('vcc', 0)}
    if op in ('exec_lo', 'exec_hi'):
        return {('exec', 0)}
    m = _reg_re.match(op)
    if not m:
        return set()
    k = m.group(1)
    if m.group(2) is not None:
        return {(k, int(m.group(2)))}
    return {(k, i) for i in range(int(m.group(3)), int(m.group(4)) + 1)}


class Ins:
    __slots__ = ('text', 'mn', 'ops', 'mods', 'rd', 'wr', 'kind', 'A', 'B', 'C', 'passes', 'states', 'target',
                 'dpp', 'store_data', 'is_label', 'lds_dma')

    def __init__(self, text):
        self.text = text
        self.is_label = False
        body = text.split(';')[0].strip()
        self.target = None
        self.dpp = False
        self.store_data = set()
        self.lds_dma = False
        self.A = self.B = self.C = set()
        self.passes = 0
        self.states = 1
        self.rd = set()
        self.wr = set()
        if body.endswith(':'):
            self.is_label = True
            self.mn = body[:-1]
            self.kind = 'label'
            self.states = 0
            self.ops = []
            return
        if body.startswith('.') or not body:
            self.mn = body
            self.kind = 'dir'
            self.states = 0
            self.ops = []
            return
        parts = body.split(None, 1)
        mn = parts[0]
        self.mn = mn
        rest = parts[1] if len(parts) > 1 else ''
        ops, cur, depth = [], '', 0
        for ch in rest:
            if ch in '[(':
                depth += 1
            if ch in '])':
                depth -= 1
            if ch == ',' and depth == 0:
                ops.append(cur.strip())
                cur = ''
            else:
                cur += ch
        mods = ''
        if cur.strip():
            last = cur.strip().split(None, 1)
            ops.append(last[0])
            mods = last[1] if len(last) > 1 else ''
        self.ops = ops
        self.mods = mods
        R = [regs_of(o) for o in ops]
        U = lambda L: set().union(*L) if L else set()
        if mn.startswith('v_mfma') or mn.startswith('v_smfmac'):
            self.kind = 'mfma'
            self.wr = R[0]
            self.A, self.B = R[1], R[2]
            if mn.startswith('v_smfmac'):
                self.C = R[0]
                self.B = self.B | R[3]
            else:
                self.C = R[3]
            self.rd = self.A | self.B | self.C
            self.passes = 8 if '32x32' in mn else 4
        elif mn.startswith('v_'):
            self.kind = 'valu'
            if 'permlane' in mn and 'swap' in mn:
                self.wr = R[0] | R[1]
                self.rd = R[0] | R[1]
            elif mn.startswith('v_cmp'):
                self.wr = R[0]
                self.rd = U(R[1:])
                if mn.startswith('v_cmpx'):
                    self.wr = self.wr | {('exec', 0)}
            elif mn.startswith(('v_add_co', 'v_sub_co', 'v_addc_co', 'v_subb_co')):
                self.wr = R[0] | R[1]
                self.rd = U(R[2:])
            elif mn == 'v_nop':
                pass
            else:
                self.wr = R[0]
                self.rd = U(R[1:])
                if mn.startswith(('v_fmac', 'v_writelane')) or '_dpp' in mn:
                    self.rd = self.rd | R[0]
            if '_dpp' in mn or 'row_' in mods or 'quad_perm' in mods:
                self.dpp = True
        elif mn.startswith('ds_'):
            self.kind = 'ds'
            if mn.startswith('ds_read') or mn.startswith('ds_bpermute') or mn.startswith('ds_swizzle'):
                self.wr = R[0]
                self.rd = U(R[1:])
            else:
                self.rd = U(R)
        elif mn.startswith(('buffer_', 'global_')):
            self.kind = 'vmem'
            toks = mods.split()
            if 'lds' in toks:
                self.lds_dma = True
                self.rd = U(R) | {('m0', 0)}
            elif '_load' in mn:
                self.wr = R[0]
                self.rd = U(R[1:])
            elif '_atomic' in mn:
                self.rd = U(R)
                if 'sc0' in toks:
                    self.wr = R[0]
            elif '_store' in mn:
                self.rd = U(R)
                if mn.endswith(('x3', 'x4')):
                    self.store_data = R[0] if mn.startswith('buffer_') else R[1]
            else:
                pass
        elif mn.startswith('s_'):
            self.kind = 'salu'
            if mn == 's_nop':
                self.states = int(ops[0], 0) + 1
                self.kind = 'nop'
            elif mn.startswith(('s_cbranch', 's_branch')):
                self.kind = 'branch'
                self.target = ops[0]
            elif mn.startswith(('s_cmp', 's_bitcmp', 's_waitcnt', 's_barrier', 's_setprio', 's_sleep', 's_endpgm')):
                self.rd = U(R)
            else:
                self.wr = R[0] if R else set()
                self.rd = U(R[1:])
                if 'saveexec' in mn:
                    self.wr = self.wr | {('exec', 0)}
        else:
            raise ValueError('unknown instr ' + text)


def need(P, C):
    n = 0
    pv = {r for r in P.wr if r[0] in 'va'}
    ps = {r for r in P.wr if r[0] in ('s', 'vcc')}
    if P.kind == 'valu':
        if C.kind == 'mfma' and pv & C.rd:
            n = max(n, 2)
        if C.kind == 'valu':
            if 'permlane' in C.mn and pv & C.rd:
                n = max(n, 2)
            if C.dpp and pv & C.rd:
                n = max(n, 2)
            if C.mn.startswith(('v_readlane', 'v_readfirstlane')) and pv & C.rd:
                n = max(n, 1)
            if P.mn.startswith(TRANS) and not C.mn.startswith(TRANS) and pv & C.rd:
                n = max(n, 1)
            if ps & C.rd:
                n = max(n, 4 if C.mn.startswith(('v_readlane', 'v_writelane')) else 2)
            if ('exec', 0) in P.wr:
                n = max(n, 5 if C.dpp else 4)
        if C.kind == 'vmem' and ps & C.rd:
            n = max(n, 5)
        if C.kind == 'mfma' and ('exec', 0) in P.wr:
            n = max(n, 4)
        if C.kind in ('salu', 'branch') and ps & C.rd:
            n = max(n, 1)
    if P.kind == 'mfma':
        big = {4: 8, 8: 12}[P.passes]
        if C.kind == 'mfma':
            if pv & (C.A | C.B):
                n = max(n, big)
            if pv & C.C:
                if not (pv == C.C and P.passes == C.passes):
                    n = max(n, {4: 6, 8: 10}[P.passes])
            elif pv & C.wr:
                n = max(n, big)
        elif C.kind in ('valu', 'ds', 'vmem'):
            if pv & (C.rd | C.wr):
                n = max(n, big)
            if C.kind == 'valu' and P.C & C.wr:
                n = max(n, {4: 3, 8: 7}[P.passes])
    if P.kind == 'salu' and ('m0', 0) in P.wr and C.lds_dma:
        n = max(n, 1)
    if P.kind == 'vmem' and P.store_data:
        if C.kind in ('valu', 'mfma') and P.store_data & C.wr:
            n = max(n, 2)
        elif P.store_data & C.wr:
            n = max(n, 1)
    return n


class Asm:
    def __init__(self):
        self.ins = []
        self.tail = []
        self.uid = 0

    def __call__(self, text):
        for line in text.split('\n'):
            line = line.strip()
            if not line:
                continue
            if line.startswith(';'):
                I = Ins('')
                I.text = line
                self.ins.append(I)
                continue
            self.ins.append(Ins(line))

    def label(self, name):
        self.ins.append(Ins(name + ':'))

    def newlabel(self, base='L'):
        self.uid += 1
        return f'{base}_{self.uid}'

    def finish(self):
        out = []
        for I in self.ins:
            if I.kind in ('label', 'dir'):
                out.append(I)
                continue
            req = 0
            dist = 0
            for P in reversed(out):
                if P.kind in ('label', 'dir'):
                    continue
                if P.mn in ('s_branch', 's_endpgm'):
                    break
                r = need(P, I) - dist
                req = max(req, r)
                dist += P.states
                if dist >= 14:
                    break
            while req > 0:
                k = min(req, 16)
                out.append(Ins(f's_nop {k-1}'))
                req -= k
            out.append(I)
        pos = {I.mn: i for i, I in enumerate(out) if I.kind == 'label'}
        errs = []
        for i, I in enumerate(out):
            if I.kind != 'branch':
                continue
            if I.target not in pos:
                raise ValueError('unknown label ' + I.target)
            prods = []
            dist = 1
            for P in reversed(out[:i]):
                if P.kind in ('label', 'dir'):
                    continue
                if P.mn in ('s_branch', 's_endpgm'):
                    break
                prods.append((P, dist))
                dist += P.states
                if dist >= 14:
                    break
            d2 = 0
            for C in out[pos[I.target]:]:
                if C.kind in ('label', 'dir'):
                    continue
                for P, d in prods:
                    if need(P, C) > d + d2:
                        errs.append(f'branch-edge hazard: [{P.text}] -> {I.text} -> [{C.text}]')
                d2 += C.states
                if d2 >= 14 or C.mn in ('s_branch', 's_endpgm'):
                    break
        if errs:
            raise ValueError('\n'.join(errs))
        return '\n'.join(('' if I.kind in ('label',) or I.text.startswith('.') else '    ') + I.text for I in out)


class VAlloc:
    def __init__(self, start=0, limit=256):
        self.p = start
        self.limit = limit
        self.hi = start

    def __call__(self, n=1, align=None):
        if align is None:
            align = 2 if n > 1 else 1
        self.p = (self.p + align - 1) // align * align
        r = self.p
        self.p += n
        assert self.p <= self.limit, f'out of VGPRs: {self.p}'
        self.hi = max(self.hi, self.p)
        return r

    def mark(self):
        return self.p

    def reset(self, m):
        self.p = m
```

```python
import sys, struct, math
from asmlib import Asm, VAlloc, v, s

NAME = 'parallel_sum__memory_aug_recurrent_mem_tr__dense_activation_silu__prompt'
OPT = dict(prof=0, force_slow=0)
for a_ in sys.argv[2:]:
    k_, val_ = a_.split('=')
    OPT[k_] = int(val_)

NSEG = 64
NSTEP = 66

XN_OFF = 0
RING_OFF = 4 << 20
MEML_OFF = RING_OFF
MEML_SLOT = 8 * 10240
SC_OFF = MEML_OFF + 4 * MEML_SLOT
SC_SLOT = 8 * 12 * 1280
PART_OFF = SC_OFF + 4 * SC_SLOT
PART_SLOT = 20 * 8 * 1024
XS_OFF = PART_OFF + 4 * PART_SLOT
XS_SLOT = 32 * 2 * 2 * 2560
RING_END = XS_OFF + 2 * XS_SLOT
assert RING_END - RING_OFF <= 3 << 20
H_OFF = 8 << 20
H_SEG = 8 * 2 * 6 * 1024
PX_OFF = 16 << 20
PX_SEG = 32 * 2 * 1280
OUTP_OFF = 24 << 20
OUTP_SEG = 20 * 8 * 4096
PROF_OFF = 80 << 20
WS_BYTES = 268435456

L_XN = 0
L_MEMB = 81920
L_MISC = 92160
L_QF = 92416
L_KF = L_QF + 1024
L_QXF = 98304
L_KXF = L_QXF + 8192
L_RED = 92416
L_OUTRED = L_RED + 8192
LDS_BYTES = L_OUTRED + 16384
assert L_KXF + 8192 <= LDS_BYTES

WS, DBG, XS_, OUTS, WA, WB = 4, 8, 12, 16, 20, 24
P_X, P_MEM0, P_WQ, P_WK, P_WV, P_WO, P_W1, P_W2, P_OUT, P_DBG, P_WS = 32, 34, 36, 38, 40, 42, 48, 50, 52, 54, 56
S_WAVE, S_J, S_C, S_SLOW, S_STEP, S_TMO = 60, 61, 62, 63, 64, 65
S_A = 66
S_H = 67
S_G = 68
S_U = 69
S_CEXP = 70
T0, T1, T2, T3, T4, T5 = 72, 73, 74, 75, 76, 77
O0, O1, O2, O3, O4, O5, O6, O7 = 80, 81, 82, 83, 84, 85, 86, 87
MK = 88

A = Asm()
stubs = []


def f32(x):
    return '0x%08x' % struct.unpack('<I', struct.pack('<f', x))[0]


def srd(r, ptr, nbytes):
    A(f's_mov_b32 {s(r)}, {s(ptr)}')
    A(f's_and_b32 {s(r+1)}, {s(ptr+1)}, 0xffff')
    A(f's_mov_b32 {s(r+2)}, {nbytes}')
    A(f's_mov_b32 {s(r+3)}, 0x00020000')


def S4(r):
    return s(r, 4)


def istore(lines):
    if isinstance(lines, str):
        lines = [lines]
    for l in lines:
        A(l)
    ls, lb = A.newlabel('Lslow'), A.newlabel('Lback')
    A(f's_cmp_lg_u32 {s(S_SLOW)}, 0')
    A(f's_cbranch_scc1 {ls}')
    A.label(lb)
    stubs.append('\n'.join([f'{ls}:'] + [l + ' sc1' for l in lines] + ['s_nop 1', f's_branch {lb}']))


def maxchain(regs, vt):
    regs = list(regs)
    if len(regs) == 1:
        A(f'v_mov_b32 {v(vt)}, {v(regs[0])}')
        return
    if len(regs) == 2:
        A(f'v_max_u32 {v(vt)}, {v(regs[0])}, {v(regs[1])}')
        return
    A(f'v_max3_u32 {v(vt)}, {v(regs[0])}, {v(regs[1])}, {v(regs[2])}')
    i = 3
    while i < len(regs):
        if i + 1 < len(regs):
            A(f'v_max3_u32 {v(vt)}, {v(vt)}, {v(regs[i])}, {v(regs[i+1])}')
            i += 2
        else:
            A(f'v_max_u32 {v(vt)}, {v(vt)}, {v(regs[i])}')
            i += 1


def poll(loads, regs, vt):
    L, R, D = A.newlabel('Lpoll'), A.newlabel('Lretry'), A.newlabel('Ldone')
    A.label(L)
    for l in loads:
        A(l)
    A('s_waitcnt vmcnt(0)')
    maxchain(regs, vt)
    A(f'v_cmp_eq_u32 vcc, -1, {v(vt)}')
    A(f's_cbranch_vccnz {R}')
    A.label(D)
    stubs.append(f'''{R}:
s_sub_u32 {s(S_TMO)}, {s(S_TMO)}, 1
s_cbranch_scc0 {L}
s_mov_b32 {s(S_TMO)}, 0
s_branch {D}''')


def mfma(d, a, b, c=None):
    cs = '0' if c is None else v(c, 4)
    A(f'v_mfma_f32_16x16x32_bf16 {v(d,4)}, {v(a,4)}, {v(b,4)}, {cs}')


def cvt(d, a, b):
    A(f'v_cvt_pk_bf16_f32 {v(d)}, {v(a)}, {v(b)}')


def build_sel(dst, T_sgpr_or_int, vt0, vt1, vt2):
    A(f'v_bfe_u32 {v(vt0)}, v0, 3, 1')
    if isinstance(T_sgpr_or_int, int):
        if T_sgpr_or_int:
            A(f'v_add_u32 {v(vt0)}, {2*T_sgpr_or_int}, {v(vt0)}')
    else:
        A(f'v_lshl_add_u32 {v(vt0)}, {T_sgpr_or_int}, 1, {v(vt0)}')
    A(f'v_lshrrev_b32 {v(vt1)}, 4, v0')
    A(f'v_cmp_eq_u32 vcc, {v(vt0)}, {v(vt1)}')
    A(f'v_and_b32 {v(vt1)}, 1, v0')
    A(f'v_lshlrev_b32 {v(vt1)}, 4, {v(vt1)}')
    A(f'v_mov_b32 {v(vt2)}, 0x3f80')
    A(f'v_lshlrev_b32 {v(vt1)}, {v(vt1)}, {v(vt2)}')
    A(f'v_cndmask_b32 {v(vt1)}, 0, {v(vt1)}, vcc')
    A(f'v_bfe_u32 {v(vt2)}, v0, 1, 2')
    for r in range(4):
        A(f'v_cmp_eq_u32 vcc, {r}, {v(vt2)}')
        A(f'v_cndmask_b32 {v(dst+r)}, 0, {v(vt1)}, vcc')


def rowperm_off(dst, stride, vt):
    A(f'v_bfe_u32 {v(dst)}, v0, 2, 2')
    A(f'v_lshlrev_b32 {v(dst)}, 3, {v(dst)}')
    A(f'v_and_b32 {v(vt)}, 3, v0')
    A(f'v_add_u32 {v(dst)}, {v(dst)}, {v(vt)}')
    A(f'v_mul_u32_u24 {v(dst)}, {stride}, {v(dst)}')
    A(f'v_and_b32 {v(vt)}, 0x30, v0')
    A(f'v_add_u32 {v(dst)}, {v(dst)}, {v(vt)}')


def tr_prep(tasks, voff, pool, dtmp, depth):
    n = len(tasks)
    depth = min(depth, len(pool))

    def issue(i):
        r_, sb, add, _ = tasks[i]
        A(f's_add_u32 {s(T0)}, {s(sb)}, {add}')
        A(f'buffer_load_dwordx4 {v(pool[i % depth],4)}, {v(voff)}, {S4(r_)}, {s(T0)} offen')
    for i in range(min(depth, n)):
        issue(i)
    pend = []
    di = 0
    for i in range(n):
        left = min(n, i + depth) - i - 1
        A(f's_waitcnt vmcnt({left})')
        new = []
        for sel, dst in tasks[i][3]:
            d = dtmp[di % len(dtmp)]
            di += 1
            mfma(d, pool[i % depth], sel)
            new.append((d, dst))
        for d, dst in pend:
            cvt(dst, d, d + 1)
            cvt(dst + 1, d + 2, d + 3)
        pend = new
        if i + depth < n:
            issue(i + depth)
    for d, dst in pend:
        cvt(dst, d, d + 1)
        cvt(dst + 1, d + 2, d + 3)


def dma_piece(p, vl16, soff, ldsbase_sgpr):
    q, r = divmod(p, 4)
    if r == 0:
        A(f's_add_u32 m0, {s(ldsbase_sgpr)}, {q*4096}')
        A(f's_add_u32 {s(T5)}, {s(soff)}, {q*4096}')
    off = f' offset:{r*1024}' if r else ''
    A(f'buffer_load_dwordx4 {v(vl16)}, {S4(WS)}, {s(T5)} offen{off} lds')


PROFN = 16


def stamp(k):
    if not OPT['prof']:
        return
    A(f's_memrealtime s[98:99]')
    A('s_waitcnt lgkmcnt(0)')
    A(f'v_writelane_b32 v255, s98, {k}')


def stampc(k):
    if not OPT['prof']:
        return
    A(f's_memtime s[98:99]')
    A('s_waitcnt lgkmcnt(0)')
    A(f'v_writelane_b32 v255, s98, {k}')


def prof_flush():
    if not OPT['prof']:
        return
    A(f's_lshl_b32 s98, {s(S_J)}, 5')
    A(f's_add_u32 s98, s98, {s(S_C)}')
    A(f's_lshl_b32 s98, s98, 3')
    A(f's_add_u32 s98, s98, {s(S_WAVE)}')
    A(f's_mul_i32 s98, s98, 80')
    A(f's_add_u32 s98, s98, {s(S_STEP)}')
    A(f's_lshl_b32 s98, s98, 6')
    A(f's_add_u32 s98, s98, {PROF_OFF}')
    A('v_lshlrev_b32 v254, 2, v0')
    A('s_mov_b64 exec, 0xffff')
    A(f'buffer_store_dword v255, v254, {S4(WS)}, s98 offen')
    A('s_mov_b64 exec, -1')


VLIM = 254 if OPT['prof'] else 256

A(f's_cmp_ge_u32 s2, 256')
A('s_cbranch_scc1 L_end')
A('s_load_dwordx16 s[32:47], s[0:1], 0')
A('s_load_dwordx8 s[48:55], s[0:1], 64')
A('s_load_dwordx2 s[56:57], s[0:1], 96')
A('v_lshrrev_b32 v1, 6, v0')
A('v_and_b32 v0, 63, v0')
A(f'v_readfirstlane_b32 {s(S_WAVE)}, v1')
A(f's_getreg_b32 {s(S_J)}, hwreg(HW_REG_XCC_ID, 0, 4)')
A(f's_mov_b32 {s(S_TMO)}, 0x30000')
A(f's_mov_b32 {s(S_SLOW)}, 0')
A(f's_mov_b32 {s(S_CEXP)}, {f32(192 ** -0.5 * math.log2(math.e))}')
A(f's_and_b32 {s(S_A)}, {s(S_WAVE)}, 3')
A('s_waitcnt lgkmcnt(0)')
srd(WS, P_WS, WS_BYTES)
srd(DBG, P_DBG, 256)
srd(XS_, P_X, 2048 * 640 * 2)
srd(OUTS, P_OUT, 2048 * 640 * 2)
srd(WA, P_WQ, 640 * 6144 * 2)
srd(WB, P_WK, 640 * 6144 * 2)
A(f's_cmp_lg_u32 {s(S_WAVE)}, 0')
A('s_cbranch_scc1 L_role_wait')
A('s_mov_b64 exec, 1')
A('v_mov_b32 v1, 1')
A('v_mov_b32 v2, 0')
A(f'v_mov_b32 v3, {L_MISC}')
A('ds_write_b32 v3, v2 offset:16')
if OPT['force_slow']:
    A(f's_lshr_b32 {s(S_J)}, s2, 5')
    A(f's_cmp_eq_u32 s2, 77')
    A('s_cbranch_scc1 L_surplus')
A(f's_cmp_gt_u32 {s(S_J)}, 7')
A('s_cbranch_scc1 L_surplus')
A(f's_lshl_b32 {s(T0)}, {s(S_J)}, 5')
A(f'buffer_atomic_add v1, off, {S4(DBG)}, {s(T0)} sc0')
A('s_waitcnt vmcnt(0)')
A(f'v_readfirstlane_b32 {s(S_C)}, v1')
A(f's_cmp_ge_u32 {s(S_C)}, 32')
A('s_cbranch_scc1 L_surplus')
A.label('L_role_pub')
A('s_mov_b64 exec, 1')
A(f'v_mov_b32 v4, {s(S_J)}')
A(f'v_mov_b32 v5, {s(S_C)}')
A('ds_write_b64 v3, v[4:5]')
A('s_waitcnt lgkmcnt(0)')
A('s_mov_b64 exec, -1')
A.label('L_role_wait')
A('s_barrier')
A(f'v_mov_b32 v3, {L_MISC}')
A('ds_read_b64 v[4:5], v3')
A('s_waitcnt lgkmcnt(0)')
A(f'v_readfirstlane_b32 {s(S_J)}, v4')
A(f'v_readfirstlane_b32 {s(S_C)}, v5')
A(f's_and_b32 {s(S_J)}, {s(S_J)}, 7')
A(f's_and_b32 {s(S_C)}, {s(S_C)}, 31')
A(f's_mov_b32 {s(S_STEP)}, 0')
A(f's_cmp_ge_u32 {s(S_WAVE)}, 4')
A('s_cbranch_scc1 L_aux_pro')
A(f's_cmp_ge_u32 {s(S_C)}, 20')
A('s_cbranch_scc1 L_SM')
A('s_branch L_ZM')

stubs.append(f'''L_surplus:
v_mov_b32 v1, 1
s_mov_b32 {s(T0)}, 16
buffer_atomic_add v1, off, {S4(DBG)}, {s(T0)} sc0
s_waitcnt vmcnt(0)
v_readfirstlane_b32 {s(T1)}, v1
s_mov_b64 exec, -1
v_lshlrev_b32 v6, 4, v0
L_sur_poll:
buffer_load_dword v7, v6, {S4(DBG)}, 0 offen sc1
s_waitcnt vmcnt(0)
v_readlane_b32 {s(T2)}, v7, 1
v_min_u32 v7, 32, v7
s_nop 1
''' + '\n'.join(f'v_readlane_b32 {s(T3)}, v7, {2*i}\ns_nop 0\ns_add_u32 {s(T2)}, {s(T2)}, {s(T3)}' for i in range(8)) + f'''
s_cmp_ge_u32 {s(T2)}, 256
s_cbranch_scc1 L_sur_find
s_sub_u32 {s(S_TMO)}, {s(S_TMO)}, 1
s_cbranch_scc0 L_sur_poll
s_mov_b32 {s(S_TMO)}, 0
L_sur_find:
s_mov_b32 {s(S_J)}, 0
s_mov_b32 {s(T2)}, 0
L_sur_loop:
s_nop 3
v_readlane_b32 {s(T3)}, v7, {s(T2)}
s_nop 0
s_add_u32 {s(S_C)}, {s(T3)}, {s(T1)}
s_cmp_lt_u32 {s(S_C)}, 32
s_cbranch_scc1 L_role_pub
s_sub_u32 {s(T1)}, {s(S_C)}, 32
s_add_u32 {s(S_J)}, {s(S_J)}, 1
s_add_u32 {s(T2)}, {s(T2)}, 2
s_cmp_lt_u32 {s(S_J)}, 8
s_cbranch_scc1 L_sur_loop
s_branch L_role_pub''')

A.label('L_aux_pro')
A('v_lshlrev_b32 v1, 4, v0')
A(f's_lshl_b32 {s(T1)}, {s(S_J)}, 5')
A(f's_add_u32 {s(T1)}, {s(T1)}, {s(S_C)}')
A(f's_lshl_b32 {s(T2)}, {s(T1)}, 2')
A(f's_add_u32 {s(T2)}, {s(T2)}, {s(S_A)}')
A(f's_mul_i32 {s(T2)}, {s(T2)}, 3072')
A(f's_add_u32 {s(T2)}, {s(T2)}, {RING_OFF}')
for r in range(4):
    A(f'v_mov_b32 v{4+r}, -1')
for i in range(3):
    A(f'buffer_store_dwordx4 v[4:7], v1, {S4(WS)}, {s(T2)} offen offset:{i*1024} sc1')
A(f's_cmp_lt_u32 {s(S_A)}, 2')
A('s_cbranch_scc1 L_ln_done')
A(f's_lshl_b32 {s(T2)}, {s(T1)}, 1')
A(f's_add_u32 {s(T2)}, {s(T2)}, {s(S_A)}')
A(f's_sub_u32 {s(T2)}, {s(T2)}, 2')
A(f's_lshl_b32 {s(T2)}, {s(T2)}, 2')
A(f's_mul_i32 {s(T3)}, {s(T2)}, 1280')
A('v_lshrrev_b32 v8, 4, v0')
A('v_and_b32 v9, 15, v0')
A('v_mul_u32_u24 v10, 1280, v8')
A('v_lshl_add_u32 v10, v9, 4, v10')
LX = 12
for i in range(5):
    A(f'buffer_load_dwordx4 {v(LX+4*i,4)}, v10, {S4(XS_)}, {s(T3)} offen offset:{i*256}')
A(f's_lshr_b32 {s(T3)}, {s(T2)}, 5')
A(f's_mul_i32 {s(T3)}, {s(T3)}, 40960')
A(f's_bfe_u32 {s(T4)}, {s(T2)}, 0x10004')
A(f's_lshl_b32 {s(T4)}, {s(T4)}, 10')
A(f's_add_u32 {s(T3)}, {s(T3)}, {s(T4)}')
A(f's_and_b32 {s(T4)}, {s(T2)}, 15')
A(f's_lshl_b32 {s(T4)}, {s(T4)}, 4')
A(f's_add_u32 {s(T3)}, {s(T3)}, {s(T4)}')
A('v_lshrrev_b32 v11, 2, v9')
A('v_lshlrev_b32 v11, 11, v11')
A('v_and_b32 v9, 3, v9')
A('v_lshl_add_u32 v11, v9, 8, v11')
A('v_lshl_add_u32 v11, v8, 4, v11')
LU = 40
A('s_waitcnt vmcnt(0)')
for i in range(20):
    A(f'v_lshlrev_b32 {v(LU+2*i)}, 16, {v(LX+i)}')
    A(f'v_and_b32 {v(LU+2*i+1)}, 0xffff0000, {v(LX+i)}')
A(f'v_pk_add_f32 v[2:3], {v(LU,2)}, {v(LU+2,2)}')
for i in range(2, 20):
    A(f'v_pk_add_f32 v[2:3], v[2:3], {v(LU+2*i,2)}')
A('v_add_f32 v2, v2, v3')


def row16_sum(r):
    for sh in (8, 4, 2, 1):
        A(f'v_add_f32_dpp {v(r)}, {v(r)}, {v(r)} row_ror:{sh} row_mask:0xf bank_mask:0xf')


row16_sum(2)
A(f'v_mul_f32 v2, {f32(1.0/640)}, v2')
A('v_mov_b32 v3, 0')
A('v_mov_b32 v8, 0')
for i in range(20):
    A(f'v_sub_f32 v4, {v(LU+2*i)}, v2')
    A(f'v_sub_f32 v5, {v(LU+2*i+1)}, v2')
    A('v_fmac_f32 v3, v4, v4')
    A('v_fmac_f32 v8, v5, v5')
A('v_add_f32 v3, v3, v8')
row16_sum(3)
A(f'v_mul_f32 v3, {f32(1.0/640)}, v3')
cvt(2, 2, 3)
A('v_and_b32 v3, 0xffff0000, v2')
A('v_lshlrev_b32 v2, 16, v2')
A(f'v_add_f32 v3, {f32(1e-5)}, v3')
cvt(3, 3, 3)
A('v_and_b32 v3, 0xffff0000, v3')
A('v_sqrt_f32 v3, v3')
cvt(3, 3, 3)
A('v_and_b32 v3, 0xffff0000, v3')
A('v_rcp_f32 v8, v3')
for i in range(20):
    A(f'v_sub_f32 v4, {v(LU+2*i)}, v2')
    A(f'v_sub_f32 v5, {v(LU+2*i+1)}, v2')
    cvt(4, 4, 5)
    A('v_and_b32 v5, 0xffff0000, v4')
    A('v_lshlrev_b32 v4, 16, v4')
    A('v_mul_f32 v4, v4, v8')
    A('v_mul_f32 v5, v5, v8')
    cvt(LX + i, 4, 5)
for i in range(5):
    if i:
        A(f's_add_u32 {s(T3)}, {s(T3)}, 8192')
    A(f'buffer_store_dwordx4 {v(LX+4*i,4)}, v11, {S4(WS)}, {s(T3)} offen sc1')
A.label('L_ln_done')
A('s_waitcnt vmcnt(0)')
A('s_mov_b64 exec, 1')
A(f'v_mov_b32 v2, {L_MISC}')
A('v_mov_b32 v3, 1')
A('ds_add_rtn_u32 v4, v2, v3 offset:16')
A('s_waitcnt lgkmcnt(0)')
A(f'v_readfirstlane_b32 {s(T0)}, v4')
A(f's_cmp_lg_u32 {s(T0)}, 3')
A('s_cbranch_scc1 L_no_arrive')
A(f's_mov_b32 {s(T0)}, 144')
A(f'buffer_atomic_add v3, off, {S4(DBG)}, {s(T0)}')
A.label('L_no_arrive')
A('s_mov_b64 exec, -1')
A(f's_cmp_ge_u32 {s(S_C)}, 20')
A('s_cbranch_scc1 L_SA')
A('s_branch L_ZA')


def grid_wait_and_xn0():
    Ls = A.newlabel('Lgw_skip')
    L = A.newlabel('Lgw')
    D = A.newlabel('Lgw_done')
    A(f's_cmp_lg_u32 {s(S_A)}, 0')
    A(f's_cbranch_scc1 {Ls}')
    A(f's_mov_b32 {s(T0)}, 144')
    A(f's_mov_b32 {s(T1)}, 16')
    A.label(L)
    A(f'buffer_load_dword v2, off, {S4(DBG)}, {s(T0)} sc1')
    A('s_waitcnt vmcnt(0)')
    A(f'v_readfirstlane_b32 {s(T2)}, v2')
    A(f's_cmp_ge_u32 {s(T2)}, 256')
    A(f's_cbranch_scc1 {D}')
    A('s_sleep 4')
    A(f's_sub_u32 {s(S_TMO)}, {s(S_TMO)}, 1')
    A(f's_cbranch_scc0 {L}')
    A(f's_mov_b32 {s(S_TMO)}, 0')
    A.label(D)
    A(f'buffer_load_dword v2, off, {S4(DBG)}, {s(T1)} sc1')
    A(f's_mov_b32 {s(T3)}, {XN_OFF}')
    A(f's_mov_b32 {s(T4)}, {L_XN}')
    for p in range(40):
        dma_piece(p, 1, T3, T4)
    A(f'v_mov_b32 v3, {L_MISC}')
    A('s_waitcnt vmcnt(0)')
    A('ds_write_b32 v3, v2 offset:32')
    A('s_waitcnt lgkmcnt(0)')
    A.label(Ls)


def read_slow(vt):
    A(f'v_mov_b32 {v(vt)}, {L_MISC}')
    A(f'ds_read_b32 {v(vt)}, {v(vt)} offset:32')
    A('s_waitcnt lgkmcnt(0)')
    A(f'v_readfirstlane_b32 {s(S_SLOW)}, {v(vt)}')


def s_role_ids():
    A(f's_sub_u32 {s(S_U)}, {s(S_C)}, 20')
    A(f's_mul_i32 {s(S_H)}, {s(S_U)}, 43')
    A(f's_lshr_b32 {s(S_H)}, {s(S_H)}, 7')
    A(f's_mul_i32 {s(S_G)}, {s(S_H)}, 3')
    A(f's_sub_u32 {s(S_G)}, {s(S_U)}, {s(S_G)}')
    A(f's_lshl_b32 {s(T0)}, {s(S_J)}, 2')
    A(f's_add_u32 {s(S_H)}, {s(S_H)}, {s(T0)}')


def meml_poll_to_lds(vP, vOffG, vOffG2, vLds, vLds2, sOff, vt):
    loads = [f'buffer_load_dwordx4 {v(vP,4)}, {v(vOffG)}, {S4(WS)}, {s(sOff)} offen sc1',
             f'buffer_load_dwordx4 {v(vP+4,4)}, {v(vOffG)}, {S4(WS)}, {s(sOff)} offen offset:1024 sc1',
             f'buffer_load_dwordx4 {v(vP+8,4)}, {v(vOffG2)}, {S4(WS)}, {s(sOff)} offen sc1']
    poll(loads, range(vP, vP + 12), vt)
    A(f'ds_write_b128 {v(vLds)}, {v(vP,4)}')
    A(f'ds_write_b128 {v(vLds)}, {v(vP+4,4)} offset:1024')
    A(f'ds_write_b128 {v(vLds2)}, {v(vP+8,4)}')


def meml_addr_setup(vOffG, vOffG2, vLds, vLds2):
    A(f's_mul_i32 {s(T0)}, {s(S_A)}, 2560')
    A(f'v_add_u32 {v(vOffG)}, {s(T0)}, v1')
    A(f'v_and_b32 {v(vOffG2)}, 0x1ff, v1')
    A(f's_add_u32 {s(T0)}, {s(T0)}, 2048')
    A(f'v_add_u32 {v(vOffG2)}, {s(T0)}, {v(vOffG2)}')
    A(f'v_add_u32 {v(vLds)}, {L_MEMB}, {v(vOffG)}')
    A(f'v_add_u32 {v(vLds2)}, {L_MEMB}, {v(vOffG2)}')


def slot_off(dst, add, base_sgpr, slot_bytes, mask=3):
    if add:
        A(f's_add_u32 {s(dst)}, {s(S_STEP)}, {add}')
        A(f's_and_b32 {s(dst)}, {s(dst)}, {mask}')
    else:
        A(f's_and_b32 {s(dst)}, {s(S_STEP)}, {mask}')
    A(f's_mul_i32 {s(dst)}, {s(dst)}, {slot_bytes}')
    A(f's_add_u32 {s(dst)}, {s(dst)}, {s(base_sgpr)}')


def bulk_loop(vXaddr, stg, nst, body, extra=None):
    def rd(kk):
        b = stg + (kk % nst) * 8
        A(f'ds_read_b128 {v(b,4)}, {v(vXaddr)} offset:{kk*2048}')
        A(f'ds_read_b128 {v(b+4,4)}, {v(vXaddr)} offset:{kk*2048+1024}')
    for kk in range(nst - 1):
        rd(kk)
    for kk in range(20):
        if kk + nst - 1 < 20:
            rd(kk + nst - 1)
        left = min(20, kk + nst) - kk - 1
        A(f's_waitcnt lgkmcnt({2*left})')
        b = stg + (kk % nst) * 8
        body(kk, b, b + 4)
        if extra:
            extra(kk)


def mem_loop(vMaddr, stg, nst, body):
    def rd(kk):
        A(f'ds_read_b128 {v(stg + (kk % nst)*4,4)}, {v(vMaddr)} offset:{kk*512}')
    for kk in range(nst - 1):
        rd(kk)
    for kk in range(20):
        if kk + nst - 1 < 20:
            rd(kk + nst - 1)
        left = min(20, kk + nst) - kk - 1
        A(f's_waitcnt lgkmcnt({left})')
        body(kk, stg + (kk % nst) * 4)


A.label('L_SM')
s_role_ids()
V = VAlloc(1, VLIM)
vL16 = V()
vXa = V()
vMa = V()
vQw = V()
vXw = V()
vt0, vt1, vt2 = V(), V(), V()
WQ = V(80, 4)
WK = V(80, 4)
ACC = V(16, 4)
STG = V(32, 4)
CV = V(8, 2)
SEL = V(4, 4)
A(f'v_lshlrev_b32 {v(vL16)}, 4, v0')
A(f's_and_b32 {s(T1)}, {s(S_A)}, 1')
build_sel(SEL, s(T1), vt0, vt1, vt2)
rowperm_off(vt0, 12288, vt1)
A(f's_mul_i32 {s(O0)}, {s(S_H)}, 384')
A(f's_lshl_b32 {s(T1)}, {s(S_G)}, 7')
A(f's_add_u32 {s(O0)}, {s(O0)}, {s(T1)}')
A(f's_lshr_b32 {s(T1)}, {s(S_A)}, 1')
A(f's_lshl_b32 {s(T1)}, {s(T1)}, 6')
A(f's_add_u32 {s(O0)}, {s(O0)}, {s(T1)}')
tasks = []
for kk in range(20):
    for Tp in range(2):
        tasks.append((WA, O0, (32 * kk + 4 * Tp) * 12288, [(SEL, WQ + 4 * kk + 2 * Tp)]))
        tasks.append((WB, O0, (32 * kk + 4 * Tp) * 12288, [(SEL, WK + 4 * kk + 2 * Tp)]))
tr_prep(tasks, vt0, [STG + 4 * i for i in range(8)], [ACC + 4 * i for i in range(4)], 8)
A(f'v_and_b32 {v(vMa)}, 7, v0')
A(f'v_lshlrev_b32 {v(vMa)}, 4, {v(vMa)}')
A(f'v_lshrrev_b32 {v(vt0)}, 4, v0')
A(f'v_lshl_add_u32 {v(vMa)}, {v(vt0)}, 7, {v(vMa)}')
A(f'v_lshrrev_b32 {v(vt1)}, 5, v0')
A(f'v_bfe_u32 {v(vt2)}, v0, 4, 1')
A(f'v_and_b32 {v(vQw)}, 7, v0')
A(f'v_lshlrev_b32 {v(vQw)}, 4, {v(vQw)}')
A(f'v_lshl_add_u32 {v(vQw)}, {v(vt1)}, 7, {v(vQw)}')
A(f'v_lshl_add_u32 {v(vQw)}, {v(vt2)}, 3, {v(vQw)}')
A(f's_lshl_b32 {s(T1)}, {s(S_A)}, 8')
A(f's_add_u32 {s(T1)}, {s(T1)}, {L_QF}')
A(f'v_add_u32 {v(vQw)}, {s(T1)}, {v(vQw)}')
A(f'v_and_b32 {v(vXw)}, 15, v0')
A(f'v_lshlrev_b32 {v(vXw)}, 4, {v(vXw)}')
A(f'v_lshl_add_u32 {v(vXw)}, {v(vt1)}, 8, {v(vXw)}')
A(f'v_lshl_add_u32 {v(vXw)}, {v(vt2)}, 3, {v(vXw)}')
A(f's_lshl_b32 {s(T1)}, {s(S_A)}, 9')
A(f's_add_u32 {s(T1)}, {s(T1)}, {L_QXF}')
A(f'v_add_u32 {v(vXw)}, {s(T1)}, {v(vXw)}')
A(f'v_add_u32 {v(vMa)}, {L_MEMB}, {v(vMa)}')
A(f'v_mov_b32 {v(vXa)}, {v(vL16)}')
A(f's_mul_i32 {s(O2)}, {s(S_A)}, 10240')
A(f's_add_u32 {s(O1)}, {s(O2)}, {XN_OFF + 40960}')
A(f's_lshl_b32 {s(O3)}, {s(O2)}, 1')
A(f's_add_u32 {s(O3)}, {s(O3)}, {2*L_XN + 40960}')
A(f's_add_u32 {s(O2)}, {s(O2)}, {L_XN + 40960}')
A(f's_mov_b32 {s(S_STEP)}, -1')
A('s_barrier')
A('s_branch L_SM_bulk')

A.label('L_SM_loop')
A('s_waitcnt vmcnt(0) lgkmcnt(0)')
A('s_barrier')
stamp(0)


def body(kk, f):
    mfma(ACC, WQ + 4 * kk, f, None if kk == 0 else ACC)
    mfma(ACC + 4, WK + 4 * kk, f, None if kk == 0 else ACC + 4)


mem_loop(vMa, STG, 8, body)
cvt(CV, ACC, ACC + 1)
cvt(CV + 1, ACC + 2, ACC + 3)
cvt(CV + 2, ACC + 4, ACC + 5)
cvt(CV + 3, ACC + 6, ACC + 7)
A(f'ds_write_b64 {v(vQw)}, {v(CV,2)}')
A(f'ds_write_b64 {v(vQw)}, {v(CV+2,2)} offset:1024')
A('s_waitcnt lgkmcnt(0)')
A('s_barrier')
stamp(1)
A.label('L_SM_bulk')
A(f's_cmp_ge_i32 {s(S_STEP)}, {NSEG-1}')
A('s_cbranch_scc1 L_SM_next')
A(f's_cmp_ge_i32 {s(S_STEP)}, {NSEG-2}')
A(f's_cselect_b32 {s(T0)}, 40960, 0')
A(f's_sub_u32 {s(O1)}, {s(O1)}, {s(T0)}')


def body(kk, f0, f1):
    z = kk == 0
    mfma(ACC, WQ + 4 * kk, f0, None if z else ACC)
    mfma(ACC + 4, WQ + 4 * kk, f1, None if z else ACC + 4)
    mfma(ACC + 8, WK + 4 * kk, f0, None if z else ACC + 8)
    mfma(ACC + 12, WK + 4 * kk, f1, None if z else ACC + 12)


def extra(kk):
    if 5 <= kk < 15:
        dma_piece(kk - 5, vL16, O1, O2)


bulk_loop(vXa, STG, 4, body, extra)
for i in range(4):
    cvt(CV + 2 * i, ACC + 4 * i, ACC + 4 * i + 1)
    cvt(CV + 2 * i + 1, ACC + 4 * i + 2, ACC + 4 * i + 3)
A(f'ds_write_b64 {v(vXw)}, {v(CV,2)}')
A(f'ds_write_b64 {v(vXw)}, {v(CV+2,2)} offset:2048')
A(f'ds_write_b64 {v(vXw)}, {v(CV+4,2)} offset:8192')
A(f'ds_write_b64 {v(vXw)}, {v(CV+6,2)} offset:{8192+2048}')
A(f's_add_u32 {s(O1)}, {s(O1)}, 40960')
A(f's_sub_u32 {s(O2)}, {s(O3)}, {s(O2)}')
A(f'v_xor_b32 {v(vXa)}, 40960, {v(vXa)}')
A(f'v_xor_b32 {v(vXw)}, 4096, {v(vXw)}')
A.label('L_SM_next')
stamp(2)
prof_flush()
A(f's_add_u32 {s(S_STEP)}, {s(S_STEP)}, 1')
A(f's_cmp_lt_i32 {s(S_STEP)}, {NSTEP}')
A('s_cbranch_scc1 L_SM_loop')
A('s_endpgm')

A.label('L_SA')
s_role_ids()
V = VAlloc(2, VLIM)
vt0, vt1, vt2 = V(), V(), V()
vOG, vOG2, vLd, vLd2 = V(), V(), V(), V()
vQr = V()
vKr = V()
vKx = V()
vSCo = V()
vXa = V()
vL8 = V()
vL4 = V()
PB = V(12, 4)
QB = V(8, 4)
KA = V(8, 4)
DS = V(4, 4)
NEG = V(4, 4)
m_sa = V.mark()
W1 = V(80, 4)
STG = V(32, 4)
ACC = V(16, 4)
SEL = V(4, 4)
meml_addr_setup(vOG, vOG2, vLd, vLd2)
for r in range(4):
    A(f'v_mov_b32 {v(NEG+r)}, -1')
A(f'v_lshlrev_b32 {v(vL8)}, 3, v0')
A(f'v_lshlrev_b32 {v(vL4)}, 2, v0')
A(f'v_lshrrev_b32 {v(vt0)}, 4, v0')
A(f'v_and_b32 {v(vt1)}, 7, v0')
A(f'v_lshlrev_b32 {v(vQr)}, 4, {v(vt1)}')
A(f'v_lshl_add_u32 {v(vQr)}, {v(vt0)}, 7, {v(vQr)}')
A(f'v_add_u32 {v(vQr)}, {L_QF}, {v(vQr)}')
A(f'v_bfe_u32 {v(vKr)}, v0, 2, 2')
A(f'v_lshlrev_b32 {v(vKr)}, 1, {v(vKr)}')
A(f'v_and_b32 {v(vt2)}, 1, v0')
A(f'v_add_u32 {v(vKr)}, {v(vKr)}, {v(vt2)}')
A(f'v_lshlrev_b32 {v(vKr)}, 4, {v(vKr)}')
A(f'v_lshl_add_u32 {v(vKr)}, {v(vt0)}, 7, {v(vKr)}')
A(f'v_add_u32 {v(vKr)}, {L_KF}, {v(vKr)}')
A(f'v_add_u32 {v(vKx)}, {L_QXF}, v1')
A(f's_mul_i32 {s(O0)}, {s(S_J)}, 10240')
A(f's_add_u32 {s(O0)}, {s(O0)}, {MEML_OFF}')
A(f's_mul_i32 {s(O1)}, {s(S_J)}, 12')
A(f's_add_u32 {s(O1)}, {s(O1)}, {s(S_U)}')
A(f's_mul_i32 {s(O1)}, {s(O1)}, 1280')
A(f's_add_u32 {s(O1)}, {s(O1)}, {SC_OFF}')
A(f's_cmp_ge_u32 {s(S_A)}, 2')
A('s_cbranch_scc1 L_SA23')

A(f'v_lshlrev_b32 {v(vSCo)}, 4, {v(vt1)}')
A(f'v_lshl_add_u32 {v(vSCo)}, {v(vt0)}, 8, {v(vSCo)}')
A(f's_lshl_b32 {s(T1)}, {s(S_A)}, 7')
A(f'v_add_u32 {v(vSCo)}, {s(T1)}, {v(vSCo)}')
A(f's_lshl_b32 {s(T1)}, {s(S_A)}, 10')
A(f'v_add_u32 {v(vXa)}, {s(T1)}, v1')
A(f's_lshl_b32 {s(T1)}, {s(S_A)}, 11')
A(f'v_add_u32 {v(vKx)}, {s(T1)}, {v(vKx)}')
srd(WA, P_W1, 640 * 1536 * 2)
A(f's_and_b32 {s(T1)}, {s(S_U)}, 1')
build_sel(SEL, s(T1), vt0, vt1, vt2)
rowperm_off(vt0, 3072, vt1)
A(f's_mul_i32 {s(O2)}, {s(S_J)}, 384')
A(f's_lshr_b32 {s(T1)}, {s(S_U)}, 1')
A(f's_lshl_b32 {s(T1)}, {s(T1)}, 6')
A(f's_add_u32 {s(O2)}, {s(O2)}, {s(T1)}')
tasks = [(WA, O2, (32 * kk + 4 * Tp) * 3072, [(SEL, W1 + 4 * kk + 2 * Tp)]) for kk in range(20) for Tp in range(2)]
tr_prep(tasks, vt0, [STG + 4 * i for i in range(8)], [ACC + 4 * i for i in range(4)], 8)
A(f's_lshl_b32 {s(O2)}, {s(S_J)}, 1')
A(f's_add_u32 {s(O2)}, {s(O2)}, {s(S_A)}')
A(f's_mul_i32 {s(O2)}, {s(O2)}, 6')
A(f's_lshr_b32 {s(T1)}, {s(S_U)}, 1')
A(f's_add_u32 {s(O2)}, {s(O2)}, {s(T1)}')
A(f's_lshl_b32 {s(O2)}, {s(O2)}, 10')
A(f's_and_b32 {s(T1)}, {s(S_U)}, 1')
A(f's_lshl_b32 {s(T1)}, {s(T1)}, 3')
A(f's_add_u32 {s(O2)}, {s(O2)}, {s(T1)}')
A(f's_add_u32 {s(O2)}, {s(O2)}, {H_OFF}')
A(f's_mov_b32 {s(O7)}, {f32(-math.log2(math.e))}')
grid_wait_and_xn0()
A(f's_mov_b32 {s(S_STEP)}, -1')
A('s_barrier')
read_slow(vt0)
A('s_branch L_SA01_ffn')

A.label('L_SA01_loop')
slot_off(O3, 0, O0, MEML_SLOT)
slot_off(O4, 0, O1, SC_SLOT)
slot_off(O5, 2, O1, SC_SLOT)
stamp(0)
meml_poll_to_lds(PB, vOG, vOG2, vLd, vLd2, O3, vt0)
A('s_waitcnt lgkmcnt(0)')
A('s_barrier')
stamp(1)
A(f'ds_read_b128 {v(KA,4)}, {v(vKx)} offset:8192')
A(f'ds_read_b128 {v(KA+4,4)}, {v(vKx)} offset:{8192+1024}')
A('s_waitcnt lgkmcnt(0)')
A('s_barrier')
A(f'ds_read_b128 {v(QB,4)}, {v(vQr)}')
A(f'ds_read_b128 {v(QB+4,4)}, {v(vQr)} offset:512')
A('s_waitcnt lgkmcnt(1)')
mfma(DS, KA, QB)
A('s_waitcnt lgkmcnt(0)')
mfma(DS, KA + 4, QB + 4, DS)
for r in range(4):
    A(f'v_min_u32 {v(DS+r)}, -2, {v(DS+r)}')
istore(f'buffer_store_dwordx4 {v(DS,4)}, {v(vSCo)}, {S4(WS)}, {s(O4)} offen')
stamp(2)
istore(f'buffer_store_dwordx4 {v(NEG,4)}, {v(vSCo)}, {S4(WS)}, {s(O5)} offen')
A(f'v_xor_b32 {v(vKx)}, 4096, {v(vKx)}')
A.label('L_SA01_ffn')
A(f's_cmp_ge_i32 {s(S_STEP)}, {NSEG-1}')
A('s_cbranch_scc1 L_SA01_next')
NST = 8


def rd(kk):
    A(f'ds_read_b128 {v(STG + (kk % NST)*4,4)}, {v(vXa)} offset:{kk*2048}')


for kk in range(NST - 1):
    rd(kk)
for kk in range(20):
    if kk + NST - 1 < 20:
        rd(kk + NST - 1)
    A(f's_waitcnt lgkmcnt({min(20, kk+NST)-kk-1})')
    mfma(ACC, W1 + 4 * kk, STG + (kk % NST) * 4, None if kk == 0 else ACC)
for r in range(4):
    A(f'v_mul_f32 {v(ACC+4+r)}, {s(O7)}, {v(ACC+r)}')
for r in range(4):
    A(f'v_exp_f32 {v(ACC+4+r)}, {v(ACC+4+r)}')
for r in range(4):
    A(f'v_add_f32 {v(ACC+4+r)}, 1.0, {v(ACC+4+r)}')
for r in range(4):
    A(f'v_rcp_f32 {v(ACC+4+r)}, {v(ACC+4+r)}')
for r in range(4):
    A(f'v_mul_f32 {v(ACC+4+r)}, {v(ACC+r)}, {v(ACC+4+r)}')
cvt(ACC + 8, ACC + 4, ACC + 5)
cvt(ACC + 9, ACC + 6, ACC + 7)
istore(f'buffer_store_dwordx2 {v(ACC+8,2)}, v1, {S4(WS)}, {s(O2)} offen')
A(f's_add_u32 {s(O2)}, {s(O2)}, {H_SEG}')
A(f'v_xor_b32 {v(vXa)}, 40960, {v(vXa)}')
A.label('L_SA01_next')
stamp(3)
prof_flush()
A(f's_add_u32 {s(S_STEP)}, {s(S_STEP)}, 1')
A(f's_cmp_lt_i32 {s(S_STEP)}, {NSTEP}')
A('s_cbranch_scc1 L_SA01_loop')
A('s_endpgm')

A.label('L_SA23')
V.reset(m_sa)
XQ = V(8, 4)
XK = V(16, 4)
D0 = V(12, 4)
PP = V(24, 4)
EX = V(12, 4)
vm, vm2 = V(), V()
A(f'v_lshlrev_b32 {v(vSCo)}, 3, {v(vt1)}')
A(f'v_lshl_add_u32 {v(vSCo)}, {v(vt0)}, 6, {v(vSCo)}')
A(f'v_add_u32 {v(vSCo)}, 1024, {v(vSCo)}')
A(f's_sub_u32 {s(O7)}, {s(S_A)}, 2')
A(f'v_and_b32 {v(vXa)}, 15, v0')
A(f's_lshl_b32 {s(T1)}, {s(O7)}, 4')
A(f'v_add_u32 {v(vXa)}, {s(T1)}, {v(vXa)}')
A(f'v_lshlrev_b32 {v(vt2)}, 2, {v(vt0)}')
A(f'v_sub_u32 {v(vXa)}, {v(vXa)}, {v(vt2)}')
A(f's_lshl_b32 {s(O2)}, {s(S_H)}, 1')
A(f's_add_u32 {s(O2)}, {s(O2)}, {s(O7)}')
A(f's_mul_i32 {s(O6)}, {s(O2)}, 1280')
A(f's_add_u32 {s(O6)}, {s(O6)}, {PX_OFF}')
A(f's_mul_i32 {s(O2)}, {s(O2)}, 5120')
A(f's_add_u32 {s(O2)}, {s(O2)}, {XS_OFF}')
A(f's_cmp_eq_u32 {s(S_G)}, 2')
A(f's_cselect_b32 {s(T1)}, 2560, 0')
A(f's_add_u32 {s(O2)}, {s(O2)}, {s(T1)}')
A('s_barrier')
read_slow(vt0)

A.label('L_SA23_loop')
slot_off(O3, 0, O0, MEML_SLOT)
slot_off(O4, 0, O1, SC_SLOT)
slot_off(O5, 2, O1, SC_SLOT)
stamp(0)
meml_poll_to_lds(PB, vOG, vOG2, vLd, vLd2, O3, vt0)
A('s_waitcnt lgkmcnt(0)')
A('s_barrier')
A('s_barrier')
A(f'ds_read_b128 {v(KA,4)}, {v(vKr)}')
A(f'ds_read_b128 {v(QB,4)}, {v(vQr)}')
A(f'ds_read_b128 {v(KA+4,4)}, {v(vKr)} offset:512')
A(f'ds_read_b128 {v(QB+4,4)}, {v(vQr)} offset:512')
A(f's_cmp_eq_u32 {s(S_A)}, 3')
A('s_cbranch_scc1 L_SA23_x')
A('s_waitcnt lgkmcnt(2)')
mfma(DS, KA, QB)
A('s_waitcnt lgkmcnt(0)')
mfma(DS, KA + 4, QB + 4, DS)
for r in range(2):
    A(f'v_min_u32 {v(DS+r)}, -2, {v(DS+r)}')
istore(f'buffer_store_dwordx2 {v(DS,2)}, {v(vSCo)}, {S4(WS)}, {s(O4)} offen')
istore(f'buffer_store_dwordx2 {v(NEG,2)}, {v(vSCo)}, {S4(WS)}, {s(O5)} offen')
A.label('L_SA23_x')
stamp(1)
A(f's_cmp_ge_i32 {s(S_STEP)}, {NSEG}')
A('s_cbranch_scc1 L_SA23_next')
A(f's_lshl_b32 {s(T1)}, {s(O7)}, 11')
A(f'v_add_u32 {v(vt0)}, {s(T1)}, {v(vKx)}')
A(f'ds_read_b128 {v(XQ,4)}, {v(vt0)}')
A(f'ds_read_b128 {v(XQ+4,4)}, {v(vt0)} offset:1024')
for i in range(4):
    A(f'ds_read_b128 {v(XK+4*i,4)}, {v(vKx)} offset:{8192+1024*i}')
slot_off(O3, 0, O2, XS_SLOT, 1)
A('s_waitcnt lgkmcnt(0)')
mfma(D0, XK, XQ)
mfma(D0 + 4, XK + 8, XQ)
mfma(D0 + 8, KA, XQ)
mfma(D0, XK + 4, XQ + 4, D0)
mfma(D0 + 4, XK + 12, XQ + 4, D0 + 4)
mfma(D0 + 8, KA + 4, XQ + 4, D0 + 8)
A(f'v_xor_b32 {v(vKx)}, 4096, {v(vKx)}')
A(f's_cmp_eq_u32 {s(S_G)}, {s(O7)}')
A('s_nop 7')
A('s_cbranch_scc1 L_SA23_own')
for r in range(10):
    A(f'v_min_u32 {v(D0+r)}, -2, {v(D0+r)}')
istore([f'buffer_store_dwordx4 {v(D0,4)}, v1, {S4(WS)}, {s(O3)} offen',
        f'buffer_store_dwordx4 {v(D0+4,4)}, v1, {S4(WS)}, {s(O3)} offen offset:1024',
        f'buffer_store_dwordx2 {v(D0+8,2)}, {v(vL8)}, {S4(WS)}, {s(O3)} offen offset:2048'])
A('s_branch L_SA23_next')
A.label('L_SA23_own')
A(f's_add_u32 {s(T2)}, {s(O3)}, 2560')
loads, regs, resets = [], [], []
for p, so in ((0, O3), (1, T2)):
    b = PP + 12 * p
    loads += [f'buffer_load_dwordx4 {v(b,4)}, v1, {S4(WS)}, {s(so)} offen sc1',
              f'buffer_load_dwordx4 {v(b+4,4)}, v1, {S4(WS)}, {s(so)} offen offset:1024 sc1',
              f'buffer_load_dwordx2 {v(b+8,2)}, {v(vL8)}, {S4(WS)}, {s(so)} offen offset:2048 sc1']
    regs += list(range(b, b + 10))
    resets += [f'buffer_store_dwordx4 {v(NEG,4)}, v1, {S4(WS)}, {s(so)} offen',
               f'buffer_store_dwordx4 {v(NEG,4)}, v1, {S4(WS)}, {s(so)} offen offset:1024',
               f'buffer_store_dwordx2 {v(NEG,2)}, {v(vL8)}, {S4(WS)}, {s(so)} offen offset:2048']
poll(loads, regs, vt0)
istore(resets)
for r in range(0, 10, 2):
    A(f'v_pk_add_f32 {v(D0+r,2)}, {v(D0+r,2)}, {v(PP+r,2)}')
for r in range(0, 10, 2):
    A(f'v_pk_add_f32 {v(D0+r,2)}, {v(D0+r,2)}, {v(PP+12+r,2)}')
A(f'v_mov_b32 {v(vt1)}, 0xff800000')
for kt in range(2):
    for r in range(4):
        A(f'v_cmp_le_i32 vcc, {16*kt+r}, {v(vXa)}')
        A(f'v_cndmask_b32 {v(D0+4*kt+r)}, {v(vt1)}, {v(D0+4*kt+r)}, vcc')
A(f'v_max3_f32 {v(vm)}, {v(D0)}, {v(D0+1)}, {v(D0+2)}')
for r in range(3, 9, 2):
    A(f'v_max3_f32 {v(vm)}, {v(vm)}, {v(D0+r)}, {v(D0+r+1)}')
A(f'v_max_f32 {v(vm)}, {v(vm)}, {v(D0+9)}')


def xreduce(op, a, b):
    for pl in ('v_permlane16_swap_b32', 'v_permlane32_swap_b32'):
        A(f'v_mov_b32 {v(b)}, {v(a)}')
        A(f'{pl} {v(a)}, {v(b)}')
        A(f'{op} {v(a)}, {v(a)}, {v(b)}')


xreduce('v_max_f32', vm, vm2)
A(f'v_mul_f32 {v(vm)}, {s(S_CEXP)}, {v(vm)}')
for r in range(10):
    A(f'v_fma_f32 {v(EX+r)}, {v(D0+r)}, {s(S_CEXP)}, -{v(vm)}')
for r in range(10):
    A(f'v_exp_f32 {v(EX+r)}, {v(EX+r)}')
A(f'v_add_f32 {v(vm)}, {v(EX)}, {v(EX+1)}')
for r in range(2, 10):
    A(f'v_add_f32 {v(vm)}, {v(vm)}, {v(EX+r)}')
xreduce('v_add_f32', vm, vm2)
A(f'v_rcp_f32 {v(vm)}, {v(vm)}')
for r in range(10):
    A(f'v_mul_f32 {v(EX+r)}, {v(EX+r)}, {v(vm)}')
for r in range(5):
    cvt(D0 + r, EX + 2 * r, EX + 2 * r + 1)
A(f's_mul_i32 {s(T2)}, {s(S_STEP)}, {PX_SEG}')
A(f's_add_u32 {s(T2)}, {s(T2)}, {s(O6)}')
istore([f'buffer_store_dwordx4 {v(D0,4)}, v1, {S4(WS)}, {s(T2)} offen',
        f'buffer_store_dword {v(D0+4)}, {v(vL4)}, {S4(WS)}, {s(T2)} offen offset:1024'])
A.label('L_SA23_next')
A('s_waitcnt lgkmcnt(0)')
stamp(2)
prof_flush()
A(f's_add_u32 {s(S_STEP)}, {s(S_STEP)}, 1')
A(f's_cmp_lt_i32 {s(S_STEP)}, {NSTEP}')
A('s_cbranch_scc1 L_SA23_loop')
A('s_endpgm')

A.label('L_ZM')
V = VAlloc(1, VLIM)
vL16 = V()
vMa = V()
vSm = V()
vRed = V()
vOr = V()
vL4 = V()
vt0 = V()
WVO = V(160, 4)
UFc = V(8, 4)
UFp = V(8, 4)
YQ = V(4, 4)
ONES = V(4, 4)
PMW = V(6, 2)
vt1, vt2 = V(), V()
m_zm = V.mark()
TMP = V(VLIM - V.p - ((VLIM - V.p) % 4), 4)
NTMP = V.p - TMP
srd(WA, P_WV, 640 * 6144 * 2)
srd(WB, P_WO, 6144 * 640 * 2)
A(f's_lshl_b32 {s(S_H)}, {s(S_J)}, 2')
A(f's_add_u32 {s(S_H)}, {s(S_H)}, {s(S_A)}')
A(f'v_lshlrev_b32 {v(vL16)}, 4, v0')
A(f'v_lshlrev_b32 {v(vL4)}, 2, v0')
BO = TMP
assert NTMP >= 48
SEL0, SEL1 = WVO + 152, WVO + 156
build_sel(SEL0, 0, vt0, vt1, vt2)
build_sel(SEL1, 1, vt0, vt1, vt2)
rowperm_off(vt0, 1280, vt1)
A(f's_mul_i32 {s(O0)}, {s(S_H)}, {192*1280}')
A(f's_lshl_b32 {s(T1)}, {s(S_C)}, 6')
A(f's_add_u32 {s(O0)}, {s(O0)}, {s(T1)}')
tasks = [(WB, O0, (32 * ke + 4 * Tp) * 1280, [(SEL0, BO + 8 * ke + 2 * Tp), (SEL1, BO + 8 * ke + 4 + 2 * Tp)])
         for ke in range(6) for Tp in range(2)]
tr_prep(tasks, vt0, [WVO + 4 * i for i in range(12)], [WVO + 48 + 4 * i for i in range(4)], 12)
rowperm_off(vt0, 12288, vt1)
A(f's_mul_i32 {s(O0)}, {s(S_H)}, 384')
DT = [UFc, UFc + 4, UFp, UFp + 4]
fixed_pool = [q for q in range(TMP + 48, TMP + NTMP - 3, 4)] + [YQ, ONES, PMW]
groups = [(kk, Tp) for kk in range(20) for Tp in range(2)]
ld_tasks = [(gi, ke) for gi in range(40) for ke in range(6)]
free = [(q, 10 ** 9) for q in fixed_pool]
for kk in range(19, 0, -1):
    for ct in range(2):
        free.append((WVO + 8 * kk + 4 * ct, 2 * kk))
assigned = {}
nxt = 0
MAXFL = 30
inflight = []


def try_issue(cur_g):
    global nxt
    while nxt < len(ld_tasks) and len(inflight) < MAXFL:
        gi, ke = ld_tasks[nxt]
        cand = [x for x in free if x[1] >= gi]
        if not cand:
            break
        cand.sort(key=lambda x: x[1])
        q = cand[0]
        free.remove(q)
        assigned[nxt] = q
        kk, Tp = groups[gi]
        if ke == 0:
            A(f's_add_u32 {s(T0)}, {s(O0)}, {(32*kk+4*Tp)*12288}')
        off = f' offset:{ke*64}' if ke else ''
        A(f'buffer_load_dwordx4 {v(q[0],4)}, {v(vt0)}, {S4(WA)}, {s(T0)} offen{off}')
        inflight.append(nxt)
        nxt += 1


pend = None
for gi in range(40):
    kk, Tp = groups[gi]
    d0, d1 = DT[2 * (gi & 1)], DT[2 * (gi & 1) + 1]
    for ke in range(6):
        ti = gi * 6 + ke
        try_issue(gi)
        assert ti in assigned, (gi, ke)
        idx = inflight.index(ti)
        assert idx == 0
        A(f's_waitcnt vmcnt({len(inflight)-1})')
        inflight.pop(0)
        q = assigned[ti]
        mfma(d0, q[0], BO + 8 * ke, None if ke == 0 else d0)
        mfma(d1, q[0], BO + 8 * ke + 4, None if ke == 0 else d1)
        free.append(q)
        if ke == 3 and pend is not None:
            pk, pT, p0, p1 = pend
            for ct, dd in ((0, p0), (1, p1)):
                cvt(WVO + 8 * pk + 4 * ct + 2 * pT, dd, dd + 1)
                cvt(WVO + 8 * pk + 4 * ct + 2 * pT + 1, dd + 2, dd + 3)
            pend = None
    pend = (kk, Tp, d0, d1)
pk, pT, p0, p1 = pend
for ct, dd in ((0, p0), (1, p1)):
    cvt(WVO + 8 * pk + 4 * ct + 2 * pT, dd, dd + 1)
    cvt(WVO + 8 * pk + 4 * ct + 2 * pT + 1, dd + 2, dd + 3)
A(f'v_lshrrev_b32 {v(vt0)}, 4, v0')
A(f'v_bfe_u32 {v(vMa)}, v0, 2, 2')
A(f'v_lshlrev_b32 {v(vMa)}, 1, {v(vMa)}')
A(f'v_and_b32 {v(vt1)}, 1, v0')
A(f'v_add_u32 {v(vMa)}, {v(vMa)}, {v(vt1)}')
A(f'v_lshlrev_b32 {v(vMa)}, 4, {v(vMa)}')
A(f'v_lshl_add_u32 {v(vMa)}, {v(vt0)}, 7, {v(vMa)}')
A(f'v_add_u32 {v(vMa)}, {L_MEMB}, {v(vMa)}')
A(f'v_and_b32 {v(vt1)}, 7, v0')
A(f'v_bfe_u32 {v(vt2)}, v0, 3, 1')
A(f'v_lshlrev_b32 {v(vSm)}, 3, {v(vt1)}')
A(f'v_lshl_add_u32 {v(vSm)}, {v(vt0)}, 6, {v(vSm)}')
A(f'v_lshl_add_u32 {v(vSm)}, {v(vt2)}, 2, {v(vSm)}')
A(f'v_lshlrev_b32 {v(vRed)}, 4, {v(vt1)}')
A(f'v_lshl_add_u32 {v(vRed)}, {v(vt0)}, 7, {v(vRed)}')
A(f'v_lshl_add_u32 {v(vRed)}, {v(vt2)}, 12, {v(vRed)}')
A(f's_lshl_b32 {s(T1)}, {s(S_A)}, 10')
A(f's_add_u32 {s(T1)}, {s(T1)}, {L_RED}')
A(f'v_add_u32 {v(vRed)}, {s(T1)}, {v(vRed)}')
A(f's_lshl_b32 {s(T1)}, {s(S_A)}, 12')
A(f's_add_u32 {s(T1)}, {s(T1)}, {L_OUTRED}')
A(f'v_add_u32 {v(vOr)}, {s(T1)}, {v(vL16)}')
for r in range(4):
    A(f'v_mov_b32 {v(YQ+r)}, 0')
    A(f'v_mov_b32 {v(ONES+r)}, 0x3f803f80')
for r in range(6):
    A(f'v_mov_b32 {v(PMW+r)}, 0')
for r in range(8):
    A(f'v_mov_b32 {v(UFc+r)}, 0')
A(f's_mul_i32 {s(O1)}, {s(S_H)}, {3*1280}')
A(f's_add_u32 {s(O1)}, {s(O1)}, {SC_OFF}')
A(f's_mul_i32 {s(O2)}, {s(S_H)}, 2560')
A(f's_add_u32 {s(O2)}, {s(O2)}, {PX_OFF}')
A(f's_mov_b32 {s(S_STEP)}, -1')
A('s_barrier')
A('s_branch L_ZM_bulk')

V.reset(m_zm)
ACC = V(16, 4)
STG = V(24, 4)
PXR = V(8, 4)
PXM = V(2, 2)
V.reset(m_zm)
SCX = V(12, 4)
SCM = V(4, 4)
YST = V(24, 4)
YAC = V(8, 4)
V.reset(m_zm + 16)
PB_ = V(4, 4)
D2 = V(12, 4)
EXP = V(6, 2)
vm, vm2 = V(), V()

A.label('L_ZM_loop')
slot_off(O3, 0, O1, SC_SLOT)
A('s_waitcnt lgkmcnt(0)')
A('s_barrier')
stamp(0)


def body(kk, f):
    mfma(YAC, f, WVO + 8 * kk, None if kk == 0 else YAC)
    mfma(YAC + 4, f, WVO + 8 * kk + 4, None if kk == 0 else YAC + 4)


mem_loop(vMa, YST, 6, body)
cvt(YQ, YAC, YAC + 1)
cvt(YQ + 2, YAC + 4, YAC + 5)
stamp(1)
loads = []
for p in range(3):
    loads.append(f'buffer_load_dwordx4 {v(SCX+4*p,4)}, {v(vL16)}, {S4(WS)}, {s(O3)} offen offset:{1280*p} sc1')
    loads.append(f'buffer_load_dword {v(SCM+p)}, {v(vSm)}, {S4(WS)}, {s(O3)} offen offset:{1280*p+1024} sc1')
poll(loads, list(range(SCX, SCX + 12)) + [SCM, SCM + 1, SCM + 2], vt0)
stamp(2)
A(f'v_pk_add_f32 {v(SCX,2)}, {v(SCX,2)}, {v(SCX+4,2)}')
A(f'v_pk_add_f32 {v(SCX+2,2)}, {v(SCX+2,2)}, {v(SCX+6,2)}')
A(f'v_add_f32 {v(SCM)}, {v(SCM)}, {v(SCM+1)}')
A(f'v_pk_add_f32 {v(SCX,2)}, {v(SCX,2)}, {v(SCX+8,2)}')
A(f'v_pk_add_f32 {v(SCX+2,2)}, {v(SCX+2,2)}, {v(SCX+10,2)}')
A(f'v_add_f32 {v(SCM)}, {v(SCM)}, {v(SCM+2)}')
A(f'v_max3_f32 {v(vm)}, {v(SCX)}, {v(SCX+1)}, {v(SCX+2)}')
A(f'v_max3_f32 {v(vm)}, {v(vm)}, {v(SCX+3)}, {v(SCM)}')
A(f'v_max_f32_dpp {v(vm)}, {v(vm)}, {v(vm)} row_ror:8 row_mask:0xf bank_mask:0xf')
xreduce('v_max_f32', vm, vm2)
A(f'v_mul_f32 {v(vm)}, {s(S_CEXP)}, {v(vm)}')
for r in range(4):
    A(f'v_fma_f32 {v(EXP+r)}, {v(SCX+r)}, {s(S_CEXP)}, -{v(vm)}')
A(f'v_fma_f32 {v(EXP+4)}, {v(SCM)}, {s(S_CEXP)}, -{v(vm)}')
for r in range(5):
    A(f'v_exp_f32 {v(EXP+r)}, {v(EXP+r)}')
cvt(PB_, EXP, EXP + 1)
cvt(PB_ + 1, EXP + 2, EXP + 3)
A(f'v_mov_b32_dpp {v(EXP+5)}, {v(EXP+4)} row_ror:8 row_mask:0xf bank_mask:0xf')
A(f'v_mov_b32_dpp {v(PB_+2)}, {v(PB_)} row_ror:8 row_mask:0xf bank_mask:0xf')
A(f'v_mov_b32_dpp {v(PB_+3)}, {v(PB_+1)} row_ror:8 row_mask:0xf bank_mask:0xf')
cvt(PMW + 2, EXP + 4, EXP + 5)
mfma(D2 + 8, ONES, PB_)
mfma(D2, UFc, PB_)
mfma(D2 + 4, UFc + 4, PB_)
mfma(D2 + 8, ONES, PMW + 2, D2 + 8)
mfma(D2, YQ, PMW + 2, D2)
mfma(D2 + 4, YQ, PMW, D2 + 4)
A(f'v_rcp_f32 {v(vm)}, {v(D2+8)}')
for r in range(8):
    A(f'v_mul_f32 {v(D2+r)}, {v(D2+r)}, {v(vm)}')
A(f'ds_write_b128 {v(vRed)}, {v(D2,4)}')
A(f'ds_write_b128 {v(vRed)}, {v(D2+4,4)} offset:512')
A('s_waitcnt lgkmcnt(0)')
A('s_barrier')
stamp(3)
A(f'v_mov_b32 {v(PMW+2)}, 0')
A(f's_sub_u32 {s(T0)}, {s(S_STEP)}, 1')
A(f's_max_i32 {s(T0)}, {s(T0)}, 0')
A(f's_min_i32 {s(T0)}, {s(T0)}, {NSEG-1}')
A(f's_mul_i32 {s(T0)}, {s(T0)}, {PX_SEG}')
A(f's_add_u32 {s(T0)}, {s(T0)}, {s(O2)}')
for qt in range(2):
    A(f'buffer_load_dwordx4 {v(PXR+4*qt,4)}, {v(vL16)}, {S4(WS)}, {s(T0)} offen offset:{1280*qt} sc1')
    A(f'buffer_load_dword {v(PXM+qt)}, {v(vL4)}, {S4(WS)}, {s(T0)} offen offset:{1280*qt+1024} sc1')
A.label('L_ZM_bulk')
A(f's_cmp_ge_i32 {s(S_STEP)}, {NSEG-1}')
A('s_cbranch_scc1 L_ZM_xpv')


def body(kk, f0, f1):
    z = kk == 0
    mfma(ACC, f0, WVO + 8 * kk, None if z else ACC)
    mfma(ACC + 4, f1, WVO + 8 * kk, None if z else ACC + 4)
    mfma(ACC + 8, f0, WVO + 8 * kk + 4, None if z else ACC + 8)
    mfma(ACC + 12, f1, WVO + 8 * kk + 4, None if z else ACC + 12)


bulk_loop(vL16, STG, 3, body)
A.label('L_ZM_xpv')
stamp(4)
A(f's_cmp_lt_i32 {s(S_STEP)}, 1')
A('s_cbranch_scc1 L_ZM_rot')
A('s_waitcnt vmcnt(0)')
OA = STG
for qt in range(2):
    A(f'v_mov_b32 {v(PMW+3)}, {v(PXM+qt)}')
    mfma(OA + 4 * qt, UFp, PXR + 4 * qt)
    mfma(OA + 8 + 4 * qt, UFp + 4, PXR + 4 * qt)
    mfma(OA + 4 * qt, YQ, PMW + 2, OA + 4 * qt)
    mfma(OA + 8 + 4 * qt, YQ, PMW, OA + 8 + 4 * qt)
A(f'v_mov_b32 {v(PMW+3)}, 0')
for i in range(4):
    A(f'ds_write_b128 {v(vOr)}, {v(OA+4*i,4)} offset:{1024*i}')
A.label('L_ZM_rot')
A('s_nop 7')
for r in range(8):
    A(f'v_mov_b32 {v(UFp+r)}, {v(UFc+r)}')
A(f'v_mov_b32 {v(YQ+1)}, {v(YQ)}')
A(f'v_mov_b32 {v(YQ+3)}, {v(YQ+2)}')
A(f's_cmp_ge_i32 {s(S_STEP)}, {NSEG-1}')
A('s_cbranch_scc1 L_ZM_next')
for ct in range(2):
    for tt in range(2):
        cvt(UFc + 4 * ct + 2 * tt, ACC + 8 * ct + 4 * tt, ACC + 8 * ct + 4 * tt + 1)
        cvt(UFc + 4 * ct + 2 * tt + 1, ACC + 8 * ct + 4 * tt + 2, ACC + 8 * ct + 4 * tt + 3)
A.label('L_ZM_next')
A('s_waitcnt vmcnt(0) lgkmcnt(0)')
stamp(5)
prof_flush()
A(f's_add_u32 {s(S_STEP)}, {s(S_STEP)}, 1')
A(f's_cmp_lt_i32 {s(S_STEP)}, {NSTEP}')
A('s_cbranch_scc1 L_ZM_loop')
A('s_endpgm')

A.label('L_ZA')
V = VAlloc(2, VLIM)
vt0, vt1, vt2 = V(), V(), V()
vOG, vOG2, vLd, vLd2 = V(), V(), V(), V()
vMo = V()
vRr = V()
vOrr = V()
vOPo = V()
vFi = V()
vFx = V()
PB = V(12, 4)
NEG = V(4, 4)
W2 = V(24, 4)
HF = V(24, 4)
RB = V(32, 4)
OAC = V(4, 4)
SEL = V(4, 4)
DTMP = V(16, 4)
FX = V(2, 2)
meml_addr_setup(vOG, vOG2, vLd, vLd2)
for r in range(4):
    A(f'v_mov_b32 {v(NEG+r)}, -1')
srd(WA, P_W2, 1536 * 640 * 2)
srd(WB, P_MEM0, 8 * 640 * 2)
A(f's_lshr_b32 {s(T1)}, {s(S_A)}, 1')
build_sel(SEL, s(T1), vt0, vt1, vt2)
A(f'v_and_b32 {v(vt0)}, 15, v0')
A(f'v_mul_u32_u24 {v(vt0)}, 1280, {v(vt0)}')
A(f'v_and_b32 {v(vt1)}, 0x30, v0')
A(f'v_add_u32 {v(vt0)}, {v(vt0)}, {v(vt1)}')
A(f's_mul_i32 {s(O0)}, {s(S_J)}, {192*1280}')
A(f's_lshl_b32 {s(T1)}, {s(S_C)}, 6')
A(f's_add_u32 {s(O0)}, {s(O0)}, {s(T1)}')
tasks = [(WA, O0, (32 * kf + 16 * Tp) * 1280, [(SEL, W2 + 4 * kf + 2 * Tp)]) for kf in range(6) for Tp in range(2)]
tr_prep(tasks, vt0, [RB + 4 * i for i in range(8)], [DTMP + 4 * i for i in range(4)], 8)
A(f'v_lshrrev_b32 {v(vt0)}, 4, v0')
A(f'v_and_b32 {v(vt1)}, 7, v0')
A(f'v_bfe_u32 {v(vt2)}, v0, 3, 1')
A(f'v_lshlrev_b32 {v(vMo)}, 4, {v(vt1)}')
A(f'v_lshl_add_u32 {v(vMo)}, {v(vt0)}, 7, {v(vMo)}')
A(f'v_lshl_add_u32 {v(vMo)}, {v(vt2)}, 3, {v(vMo)}')
A(f'v_add_u32 {v(vRr)}, {L_RED}, v1')
A(f's_lshl_b32 {s(T1)}, {s(S_A)}, 10')
A(f's_add_u32 {s(T1)}, {s(T1)}, {L_OUTRED}')
A(f'v_add_u32 {v(vOrr)}, {s(T1)}, v1')
A(f'v_and_b32 {v(vOPo)}, 15, v0')
A(f'v_lshlrev_b32 {v(vOPo)}, 7, {v(vOPo)}')
A(f'v_lshl_add_u32 {v(vOPo)}, {v(vt0)}, 4, {v(vOPo)}')
A(f's_and_b32 {s(T1)}, {s(S_A)}, 1')
A(f's_lshl_b32 {s(T1)}, {s(T1)}, 11')
A(f's_lshr_b32 {s(T2)}, {s(S_A)}, 1')
A(f's_lshl_b32 {s(T2)}, {s(T2)}, 6')
A(f's_add_u32 {s(T1)}, {s(T1)}, {s(T2)}')
A(f'v_add_u32 {v(vOPo)}, {s(T1)}, {v(vOPo)}')
A(f's_lshl_b32 {s(T1)}, {s(S_J)}, 9')
A(f'v_lshlrev_b32 {v(vFi)}, 3, v0')
A(f'v_add_u32 {v(vFi)}, {s(T1)}, {v(vFi)}')
A(f'v_mul_u32_u24 {v(vFx)}, 1280, {v(vt0)}')
A(f'v_and_b32 {v(vt2)}, 15, v0')
A(f'v_lshl_add_u32 {v(vFx)}, {v(vt2)}, 2, {v(vFx)}')
A(f's_mul_i32 {s(T1)}, {s(S_J)}, {4*1280}')
A(f's_lshl_b32 {s(T2)}, {s(S_C)}, 6')
A(f's_add_u32 {s(T1)}, {s(T1)}, {s(T2)}')
A(f'v_add_u32 {v(vFx)}, {s(T1)}, {v(vFx)}')
A(f's_mul_i32 {s(O0)}, {s(S_J)}, 10240')
A(f's_add_u32 {s(O0)}, {s(O0)}, {MEML_OFF}')
A(f's_lshl_b32 {s(O1)}, {s(S_C)}, 13')
A(f's_add_u32 {s(O1)}, {s(O1)}, {PART_OFF}')
A(f's_lshl_b32 {s(O2)}, {s(S_J)}, 1')
A(f's_and_b32 {s(T1)}, {s(S_A)}, 1')
A(f's_add_u32 {s(O2)}, {s(O2)}, {s(T1)}')
A(f's_mul_i32 {s(O2)}, {s(O2)}, 6144')
A(f's_add_u32 {s(O2)}, {s(O2)}, {H_OFF}')
A(f's_lshl_b32 {s(O6)}, {s(S_C)}, 15')
A(f's_add_u32 {s(O6)}, {s(O6)}, {OUTP_OFF}')
A(f's_mul_i32 {s(MK)}, {s(S_A)}, 10240')
A(f's_add_u32 {s(O7)}, {s(MK)}, {XN_OFF + 40960}')
A(f'v_mul_u32_u24 {v(vt1)}, 1280, {v(vt1)}')
A(f'v_lshrrev_b32 {v(vt2)}, 3, v0')
A(f'v_lshl_add_u32 {v(vt1)}, {v(vt2)}, 3, {v(vt1)}')
A(f's_lshl_b32 {s(T1)}, {s(S_C)}, 6')
A(f'buffer_load_dwordx2 {v(RB,2)}, {v(vt1)}, {S4(WB)}, {s(T1)} offen')
grid_wait_and_xn0()
A('s_waitcnt vmcnt(0)')
A('s_barrier')
read_slow(vt0)


def final_reduce():
    A(f's_sub_u32 {s(T2)}, {s(S_STEP)}, 3')
    A(f's_mul_i32 {s(T3)}, {s(T2)}, {OUTP_SEG}')
    A(f's_add_u32 {s(T3)}, {s(T3)}, {s(O6)}')
    A(f's_mul_i32 {s(T2)}, {s(T2)}, {32*1280}')
    A(f'buffer_load_dword {v(FX)}, {v(vFx)}, {S4(XS_)}, {s(T2)} offen')
    for jj in range(8):
        if jj:
            A(f's_add_u32 {s(T3)}, {s(T3)}, 4096')
        A(f'buffer_load_dwordx2 {v(RB+2*jj,2)}, {v(vFi)}, {S4(WS)}, {s(T3)} offen sc1')
    A('s_waitcnt vmcnt(0)')
    A(f'v_and_b32 {v(FX+1)}, 0xffff0000, {v(FX)}')
    A(f'v_lshlrev_b32 {v(FX)}, 16, {v(FX)}')
    for jj in range(0, 8, 2):
        A(f'v_pk_add_f32 {v(RB+2*jj,2)}, {v(RB+2*jj,2)}, {v(RB+2*jj+2,2)}')
    A(f'v_pk_add_f32 {v(RB,2)}, {v(RB,2)}, {v(RB+4,2)}')
    A(f'v_pk_add_f32 {v(RB+8,2)}, {v(RB+8,2)}, {v(RB+12,2)}')
    A(f'v_pk_add_f32 {v(RB,2)}, {v(RB,2)}, {v(RB+8,2)}')
    A(f'v_pk_add_f32 {v(RB,2)}, {v(RB,2)}, {v(FX,2)}')
    cvt(RB, RB, RB + 1)
    A(f'buffer_store_dword {v(RB)}, {v(vFx)}, {S4(OUTS)}, {s(T2)} offen')


def part_poll():
    slot_off(O4, 0, O1, PART_SLOT)
    A(f's_add_u32 {s(T2)}, {s(O4)}, 4096')
    loads = [f'buffer_load_dwordx4 {v(RB+4*jj,4)}, v1, {S4(WS)}, {s(O4 if jj < 4 else T2)} offen offset:{(jj&3)*1024} sc1'
             for jj in range(8)]
    poll(loads, range(RB, RB + 32), vt0)


A.label('L_ZA_loop')
slot_off(O3, 0, O0, MEML_SLOT)
A(f's_cmp_lg_u32 {s(S_A)}, 1')
A('s_cbranch_scc1 L_ZA_mem')
A(f's_lshl_b32 {s(T1)}, {s(S_C)}, 9')
A(f's_add_u32 {s(O5)}, {s(O3)}, {s(T1)}')
A(f's_cmp_eq_u32 {s(S_STEP)}, 0')
A('s_cbranch_scc1 L_ZA_c1pub')
part_poll()
stamp(0)
for i in range(4):
    for h in range(2):
        A(f'v_pk_add_f32 {v(RB+8*i+2*h,2)}, {v(RB+8*i+2*h,2)}, {v(RB+8*i+4+2*h,2)}')
for i in range(2):
    for h in range(2):
        A(f'v_pk_add_f32 {v(RB+16*i+2*h,2)}, {v(RB+16*i+2*h,2)}, {v(RB+16*i+8+2*h,2)}')
for h in range(2):
    A(f'v_pk_add_f32 {v(RB+2*h,2)}, {v(RB+2*h,2)}, {v(RB+16+2*h,2)}')
cvt(RB, RB, RB + 1)
cvt(RB + 1, RB + 2, RB + 3)
A.label('L_ZA_c1pub')
A(f'v_min_u32 {v(RB)}, -2, {v(RB)}')
A(f'v_min_u32 {v(RB+1)}, -2, {v(RB+1)}')
istore(f'buffer_store_dwordx2 {v(RB,2)}, {v(vMo)}, {S4(WS)}, {s(O5)} offen')
stamp(1)
slot_off(O4, 2, O0, MEML_SLOT)
A(f's_add_u32 {s(O4)}, {s(O4)}, {s(T1)}')
istore(f'buffer_store_dwordx2 {v(NEG,2)}, {v(vMo)}, {S4(WS)}, {s(O4)} offen')
A.label('L_ZA_mem')
meml_poll_to_lds(PB, vOG, vOG2, vLd, vLd2, O3, vt0)
A('s_waitcnt lgkmcnt(0)')
stamp(2)
A('s_barrier')
A(f's_cmp_ge_i32 {s(S_STEP)}, {NSEG-1}')
A('s_cbranch_scc1 L_ZA_nodma')
for p in range(10):
    dma_piece(p, 1, O7, MK)
A(f's_add_u32 {s(O7)}, {s(O7)}, 40960')
A.label('L_ZA_nodma')
A(f's_cmp_lt_i32 {s(S_STEP)}, 2')
A('s_cbranch_scc1 L_ZA_noout')
A(f's_sub_u32 {s(T2)}, {s(S_STEP)}, 2')
A(f's_mul_i32 {s(T3)}, {s(T2)}, {H_SEG}')
A(f's_add_u32 {s(T3)}, {s(T3)}, {s(O2)}')
A(f's_add_u32 {s(T4)}, {s(T3)}, 4096')
for kf in range(6):
    A(f'buffer_load_dwordx4 {v(HF+4*kf,4)}, v1, {S4(WS)}, {s(T3 if kf < 4 else T4)} offen offset:{(kf&3)*1024} sc1')
for w in range(4):
    A(f'ds_read_b128 {v(RB+4*w,4)}, {v(vOrr)} offset:{4096*w}')
A(f's_mul_i32 {s(T3)}, {s(T2)}, {OUTP_SEG}')
A(f's_add_u32 {s(T3)}, {s(T3)}, {s(O6)}')
A(f's_lshl_b32 {s(T4)}, {s(S_J)}, 12')
A(f's_add_u32 {s(T3)}, {s(T3)}, {s(T4)}')
A('s_waitcnt lgkmcnt(0)')
for h in range(2):
    A(f'v_pk_add_f32 {v(RB+2*h,2)}, {v(RB+2*h,2)}, {v(RB+4+2*h,2)}')
    A(f'v_pk_add_f32 {v(RB+8+2*h,2)}, {v(RB+8+2*h,2)}, {v(RB+12+2*h,2)}')
for h in range(2):
    A(f'v_pk_add_f32 {v(OAC+2*h,2)}, {v(RB+2*h,2)}, {v(RB+8+2*h,2)}')
A('s_waitcnt vmcnt(0)')
for kf in range(6):
    mfma(OAC, W2 + 4 * kf, HF + 4 * kf, OAC)
A(f'buffer_store_dwordx4 {v(OAC,4)}, {v(vOPo)}, {S4(WS)}, {s(T3)} offen sc1')
A(f's_cmp_lt_i32 {s(S_STEP)}, 3')
A('s_cbranch_scc1 L_ZA_noout')
A(f's_cmp_lg_u32 {s(S_A)}, 2')
A('s_cbranch_scc1 L_ZA_noout')
final_reduce()
A.label('L_ZA_noout')
slot_off(O4, 1, O1, PART_SLOT)
slot_off(O5, 3, O1, PART_SLOT)
A(f's_lshl_b32 {s(T1)}, {s(S_J)}, 10')
A(f's_add_u32 {s(O4)}, {s(O4)}, {s(T1)}')
A(f's_add_u32 {s(O5)}, {s(O5)}, {s(T1)}')
A('s_waitcnt vmcnt(0)')
stamp(3)
A(f's_cmp_lg_u32 {s(S_A)}, 0')
A('s_barrier')
A('s_cbranch_scc1 L_ZA_next')
for w in range(4):
    A(f'ds_read_b128 {v(RB+4*w,4)}, {v(vRr)} offset:{1024*w}')
A('s_waitcnt lgkmcnt(2)')
for h in range(2):
    A(f'v_pk_add_f32 {v(RB+2*h,2)}, {v(RB+2*h,2)}, {v(RB+4+2*h,2)}')
A('s_waitcnt lgkmcnt(0)')
for h in range(2):
    A(f'v_pk_add_f32 {v(RB+8+2*h,2)}, {v(RB+8+2*h,2)}, {v(RB+12+2*h,2)}')
for h in range(2):
    A(f'v_pk_add_f32 {v(RB+2*h,2)}, {v(RB+2*h,2)}, {v(RB+8+2*h,2)}')
for r in range(4):
    A(f'v_min_u32 {v(RB+r)}, -2, {v(RB+r)}')
A(f'buffer_store_dwordx4 {v(RB,4)}, v1, {S4(WS)}, {s(O4)} offen sc1')
stamp(4)
A(f'buffer_store_dwordx4 {v(NEG,4)}, v1, {S4(WS)}, {s(O5)} offen sc1')
A.label('L_ZA_next')
prof_flush()
A(f's_add_u32 {s(S_STEP)}, {s(S_STEP)}, 1')
A(f's_cmp_lt_i32 {s(S_STEP)}, {NSTEP}')
A('s_cbranch_scc1 L_ZA_loop')
A(f's_cmp_lg_u32 {s(S_A)}, 1')
A('s_cbranch_scc1 L_end')
part_poll()
final_reduce()
A.label('L_end')
A('s_endpgm')

for st in stubs:
    A(st)
A('s_endpgm')

body_text = A.finish()

ref = open('cdna_kernels/' + NAME + '.s.ref').read().split('\n')
hdr = [l for l in ref if l.startswith(';') and '@launch' not in l and 'Override launch' not in l
       and 'grid=ceil' not in l]
out = '\n'.join(hdr) + f'''
; @launch grid=(256,1,1) block=(512,1,1) lds={LDS_BYTES}
.amdgcn_target "amdgcn-amd-amdhsa--gfx950"
.text
.globl {NAME}_kernel
.p2align 8
.type {NAME}_kernel,@function
{NAME}_kernel:
{body_text}
.section .rodata,"a"
.p2align 6
.amdhsa_kernel {NAME}_kernel
  .amdhsa_next_free_vgpr 256
  .amdhsa_next_free_sgpr 102
  .amdhsa_accum_offset 256
  .amdhsa_group_segment_fixed_size 0
  .amdhsa_kernarg_size 104
  .amdhsa_user_sgpr_count 2
  .amdhsa_user_sgpr_kernarg_segment_ptr 1
  .amdhsa_system_sgpr_workgroup_id_x 1
  .amdhsa_float_denorm_mode_32 3
.end_amdhsa_kernel
'''
open(sys.argv[1], 'w').write(out)
print('wrote', sys.argv[1], 'lines', out.count('\n'))
```
